```python
import torch

def _softmax(x, axis=-1):
    return torch.softmax(x, dim=axis)
def _gelu(x):
    return torch.nn.functional.gelu(x, approximate="tanh")
def _silu(x):
    return torch.nn.functional.silu(x)
def _sigmoid(x):
    return torch.sigmoid(x)
def _layernorm(x, axis=-1, eps=1e-5):
    m = x.mean(dim=axis, keepdim=True)
    v = x.var(dim=axis, keepdim=True, unbiased=False)
    return (x - m) / torch.sqrt(v + eps)
def _scatter_add(tgt, idx, src, axis=0):
    return tgt.clone().index_add_(axis, idx, src)
def _segment_sum(src, seg, n):
    out = torch.zeros((n,) + src.shape[1:], dtype=src.dtype)
    return out.index_add_(0, seg, src)
def _pad(x, pw):
    flat = tuple(v for pair in reversed(pw) for v in pair)
    return torch.nn.functional.pad(x, flat)

kernel_name = 'sequential_preLN__linear_kernel_hedgehog__mixer_token_mlp__prompt'

def setup_inputs():

    _w = (lambda a: (lambda t: t.to(torch.bfloat16) if t.is_floating_point() else t)(torch.as_tensor(a)))
    def _A_setup():
        B, S, D, H = 1, 2048, 448, 16
        Dh = D // H
        return {
            "x": _w((lambda *s: torch.randn(*s, dtype=torch.bfloat16) * 0.05)(B, S, D)),
            "wqkv": _w((lambda *s: torch.randn(*s, dtype=torch.bfloat16) * 0.2)(D, 3 * D)),
            "w_phi": _w((lambda *s: torch.randn(*s, dtype=torch.bfloat16) * 0.2)(H, Dh, Dh) * (Dh ** -0.5)),
            "wo": _w((lambda *s: torch.randn(*s, dtype=torch.bfloat16) * 0.05)(D, D)),
        }
    _A_in = _A_setup()

    def _B_setup():
        B, S, D, F = 1, 2048, 448, 1792
        return {
            "x": _w((lambda *s: torch.randn(*s, dtype=torch.bfloat16) * 0.05)(B, S, D)),
            "w1": _w((lambda *s: torch.randn(*s, dtype=torch.bfloat16) * 0.2)(S, F) * (S ** -0.5)),
            "b1": _w((lambda *s: torch.randn(*s, dtype=torch.bfloat16) * 3.2)(F) * 0.02),
            "w2": _w((lambda *s: torch.randn(*s, dtype=torch.bfloat16) * 0.8)(F, S) * (F ** -0.5)),
            "b2": _w((lambda *s: torch.randn(*s, dtype=torch.bfloat16) * 3.2)(S) * 0.02),
        }
    _B_in = _B_setup()

    return {
        "A_x": _A_in["x"],
        "A_wqkv": _A_in["wqkv"],
        "A_w_phi": _A_in["w_phi"],
        "A_wo": _A_in["wo"],
        "B_x": _B_in["x"],
        "B_w1": _B_in["w1"],
        "B_b1": _B_in["b1"],
        "B_w2": _B_in["w2"],
        "B_b2": _B_in["b2"],
    }

def reference(A_x, A_wqkv, A_w_phi, A_wo, B_x, B_w1, B_b1, B_w2, B_b2):
    def _A_ref(x, wqkv, w_phi, wo):
        B, S, D = x.shape
        H = 16; Dh = D // H
        qkv = (lambda x, *d: x.permute(*d))((x @ wqkv).reshape(B, S, 3, H, Dh), 2, 0, 3, 1, 4)
        q, k, v = qkv[0], qkv[1], qkv[2]
        pq = torch.einsum("bhsd,hdf->bhsf", q, w_phi)
        pk = torch.einsum("bhsd,hdf->bhsf", k, w_phi)
        phi_q = torch.concatenate([_softmax(pq, axis=-1), _softmax(-pq, axis=-1)], axis=-1)
        phi_k = torch.concatenate([_softmax(pk, axis=-1), _softmax(-pk, axis=-1)], axis=-1)
        kv = torch.einsum("bhsf,bhsd->bhfd", phi_k, v)
        z  = torch.einsum("bhsf->bhf", phi_k)
        num = torch.einsum("bhqf,bhfd->bhqd", phi_q, kv)
        den = torch.einsum("bhqf,bhf->bhq", phi_q, z)[..., None] + 1e-6
        o = num / den
        return (lambda x, *d: x.permute(*d))(o, 0, 2, 1, 3).reshape(B, S, D) @ wo

    def _B_ref(x, w1, b1, w2, b2):
        B, S, D = x.shape
        h = _layernorm(x, axis=-1)
        u = torch.einsum("bsd,sf->bdf", h, w1) + b1
        u = _gelu(u)
        y = torch.einsum("bdf,fs->bds", u, w2) + b2
        return (lambda x, *d: x.permute(*d))(y, 0, 2, 1)

    x = A_x
    h = x + _A_ref(_layernorm(x, axis=-1), A_wqkv, A_w_phi, A_wo)
    h2 = h + _B_ref(_layernorm(h, axis=-1), B_w1, B_b1, B_w2, B_b2)
    return h2
```

```python
import sys; sys.path.insert(0,'.')
from hiprt import *
def head(name):
    return f""".globl {name}
.p2align 8
.type {name},@function
{name}:
s_load_dwordx4 s[4:7], s[0:1], 0
s_waitcnt lgkmcnt(0)
s_mov_b32 s8, s6
s_mov_b32 s9, s7
s_mov_b32 s10, 0x4000000
s_mov_b32 s11, 0x20000
v_lshrrev_b32 v2, 6, v0
s_nop 1
v_readfirstlane_b32 s12, v2
v_and_b32 v1, 63, v0
v_lshlrev_b32 v1, 4, v1
s_and_b32 s13, s2, 7
s_lshl_b32 s13, s13, 20
s_lshl_b32 s14, s12, 16
s_add_u32 s13, s13, s14
s_lshl_b32 s15, s12, 14
s_mov_b32 m0, s15
"""
def tail(name, n):
    s = "s_waitcnt vmcnt(0) lgkmcnt(0)\n v_cmp_eq_u32 vcc, 0, v0\n s_and_saveexec_b64 s[16:17], vcc\n s_cbranch_execz L_end_"+name+"\n s_lshl_b32 s3, s2, 8\n v_mov_b32 v2, s3\n"
    for i in range(n):
        s += f"s_sub_u32 s{21+2*i}, s{22+2*i}, s20\n v_mov_b32 v3, s{21+2*i}\n global_store_dword v2, v3, s[4:5] offset:{4*i}\n"
    s += "L_end_"+name+":\n s_endpgm\n" + kd(name, 512, 256)
    return s
def ld(kind, i):
    if kind == 'dma': return f"s_add_u32 s14, s13, {1024*(i%64)}\n buffer_load_dwordx4 v1, s[8:11], s14 offen lds\n"
    return f"s_add_u32 s14, s13, {1024*(i%64)}\n buffer_load_dwordx4 v[{32+4*(i%32)}:{35+4*(i%32)}], v1, s[8:11], s14 offen\n"
MF = "v_mfma_f32_32x32x16_bf16 v[200:215], v[4:7], v[8:11], v[200:215]\n"
VA = "v_add_f32 v20, v21, v22\n"
def warm(kind): return "".join(ld(kind, i) for i in range(60)) + "s_waitcnt vmcnt(0)\n" + "".join(f"s_add_u32 s14, s13, {1024*(60+i)}\n buffer_load_dwordx4 v[32:35], v1, s[8:11], s14 offen\n" for i in range(4)) + "s_waitcnt vmcnt(0)\n s_barrier\n"
ks = []; src = '.amdgcn_target "amdgcn-amd-amdhsa--gfx950"\n.text\n'
for kind in ('dma', 'reg'):
    name = f"burst_{kind}"; s = head(name) + warm(kind) + "s_memtime s[20:21]\n"
    for g in range(16):
        s += ld(kind, 2*g) + ld(kind, 2*g+1) + f"s_memtime s[{22+2*g}:{23+2*g}]\n"
    s += "s_waitcnt vmcnt(0)\n" + f"s_memtime s[{22+32}:{23+32}]\n"
    src += s + tail(name, 17); ks.append((name, 17))
for kind in ('dma', 'reg', 'none'):
    for nm, nv in ((1,0),(2,0),(3,0),(4,0),(0,8),(0,16),(0,24),(2,8),(2,12),(3,15)):
        name = f"mix_{kind}_{nm}_{nv}"; s = head(name) + warm('dma') + "s_memtime s[20:21]\n"
        for i in range(32):
            if kind != 'none': s += ld(kind, i)
            per = nv // max(nm, 1)
            if nm == 0: s += VA * nv
            else:
                for k in range(nm): s += MF + VA * per
        s += "s_memtime s[22:23]\n s_waitcnt vmcnt(0)\n s_memtime s[24:25]\n"
        src += s + tail(name, 2); ks.append((name, 2))
if __name__ == "__main__":
  co = build(src, "iss", [(n, 512, 256) for n, _ in ks])
if __name__ == "__main__" and len(sys.argv) > 1:
    m = Module(co); out = Buf(256*256); data = Buf(64<<20); data.memset(0); sync()
    for name, n in ks:
        for it in range(2): m.launch(name, (256,1,1), (256,1,1), [out.ptr, data.ptr]+[0]*10, lds=65536); sync()
        o = out.down(np.uint32, 256*64).reshape(256,64)[:, :n]
        print(name, np.median(o, axis=0).astype(int).tolist())
```

```python
import sys; sys.path.insert(0,'.')
from hiprt import *
from iss import head, tail, MF
OPS = {
 'add': lambda i: f"v_add_f32 v{20+i%8}, v40, v41\n",
 'fma': lambda i: f"v_fma_f32 v{20+i%8}, v40, v41, v42\n",
 'pkfma': lambda i: f"v_pk_fma_f32 v[{20+2*(i%4)}:{21+2*(i%4)}], v[40:41], v[42:43], v[44:45]\n",
 'pkmul': lambda i: f"v_pk_mul_f32 v[{20+2*(i%4)}:{21+2*(i%4)}], v[40:41], v[42:43]\n",
 'pkadd': lambda i: f"v_pk_add_f32 v[{20+2*(i%4)}:{21+2*(i%4)}], v[40:41], v[42:43]\n",
 'pkaddchain': lambda i: f"v_pk_add_f32 v[{20+2*(i%2)}:{21+2*(i%2)}], v[{20+2*(i%2)}:{21+2*(i%2)}], v[42:43]\n",
 'dot2': lambda i: f"v_dot2_f32_bf16 v{20+i%4}, v40, v41, v{20+i%4}\n",
 'dot2c': lambda i: f"v_dot2c_f32_bf16 v{20+i%4}, v40, v41\n",
 'dot2_8': lambda i: f"v_dot2_f32_bf16 v{20+i%8}, v40, v41, v{20+i%8}\n",
 'cvt': lambda i: f"v_cvt_pk_bf16_f32 v{20+i%8}, v40, v41\n",
 'exp': lambda i: f"v_exp_f32 v{20+i%8}, v40\n",
 'max3': lambda i: f"v_max3_f32 v{20+i%2}, v{20+i%2}, v40, v41\n",
 'cnd': lambda i: f"v_cndmask_b32 v{20+i%8}, v40, v41, s[30:31]\n",
 'salu': lambda i: f"s_add_u32 s{60+i%4}, s13, 5\n",
 'and': lambda i: f"v_and_b32 v{20+i%8}, 0xffff0000, v41\n",
 'trrd': lambda i: f"ds_read_b64_tr_b16 v[{60+2*(i%8)}:{61+2*(i%8)}], v1 offset:{1024*(i%8)}\n",
 'rd128': lambda i: f"ds_read_b128 v[{60+4*(i%8)}:{63+4*(i%8)}], v1 offset:{1024*(i%8)}\n",
 'wr128': lambda i: f"ds_write_b128 v1, v[60:63] offset:{1024*(i%8)}\n",
 'wr64': lambda i: f"ds_write_b64 v1, v[60:61] offset:{1024*(i%8)}\n",
}
ks = []; src = '.amdgcn_target "amdgcn-amd-amdhsa--gfx950"\n.text\n'
for op, f in OPS.items():
    for per in (0, 3, 5):
        name = f"k_{op}_{per}"; s = head(name) + "s_barrier\n s_memtime s[20:21]\n"
        if per == 0: s += "".join(f(i) for i in range(128))
        else:
            for g in range(32): s += MF + "".join(f(g*per+i) for i in range(per))
        s += "s_memtime s[22:23]\n"
        src += s + tail(name, 1); ks.append(name)
co = build(src, "alu", [(n, 512, 256) for n in ks])
if len(sys.argv) > 1:
    m = Module(co); out = Buf(256*256); data = Buf(64<<20); data.memset(0); sync()
    res = {}
    for name in ks:
        for it in range(2): m.launch(name, (256,1,1), (256,1,1), [out.ptr, data.ptr]+[0]*10, lds=65536); sync()
        res[name] = int(np.median(out.down(np.uint32, 256*64).reshape(256,64)[:, 0]))
    for op in OPS: print("%-10s alone %.1f clk/op | per MFMA gap with 3/5 ops: %.1f %.1f" % (op, res[f"k_{op}_0"]/128, res[f"k_{op}_3"]/32, res[f"k_{op}_5"]/32))
```
